```python
import torch

def _softmax(x, axis=-1):
    return torch.softmax(x, dim=axis)
def _gelu(x):
    return torch.nn.functional.gelu(x, approximate="tanh")
def _silu(x):
    return torch.nn.functional.silu(x)
def _sigmoid(x):
    return torch.sigmoid(x)
def _layernorm(x, axis=-1, eps=1e-5):
    m = x.mean(dim=axis, keepdim=True)
    v = x.var(dim=axis, keepdim=True, unbiased=False)
    return (x - m) / torch.sqrt(v + eps)
def _scatter_add(tgt, idx, src, axis=0):
    return tgt.clone().index_add_(axis, idx, src)
def _segment_sum(src, seg, n):
    out = torch.zeros((n,) + src.shape[1:], dtype=src.dtype)
    return out.index_add_(0, seg, src)
def _pad(x, pw):
    flat = tuple(v for pair in reversed(pw) for v in pair)
    return torch.nn.functional.pad(x, flat)

kernel_name = 'interleave_layers__grouped_kv_mqa__glu_gated_geglu__prompt'

def setup_inputs():

    _w = (lambda a: (lambda t: t.to(torch.bfloat16) if t.is_floating_point() else t)(torch.as_tensor(a)))
    def _A_setup():
        B, S, D, H = 1, 2048, 640, 32
        Dh = D // H
        return {
            "x": _w((lambda *s: torch.randn(*s, dtype=torch.bfloat16) * 0.05)(B, S, D)),
            "wq": _w((lambda *s: torch.randn(*s, dtype=torch.bfloat16) * 0.05)(D, H * Dh)),
            "wk": _w((lambda *s: torch.randn(*s, dtype=torch.bfloat16) * 0.05)(D, Dh)),
            "wv": _w((lambda *s: torch.randn(*s, dtype=torch.bfloat16) * 0.05)(D, Dh)),
            "wo": _w((lambda *s: torch.randn(*s, dtype=torch.bfloat16) * 0.05)(H * Dh, D)),
        }
    _A_in = _A_setup()

    def _B_setup():
        B, S, Dm, Df = 1, 2048, 640, 1536
        return {
            "x": _w((lambda *s: torch.randn(*s, dtype=torch.bfloat16) * 0.05)(B, S, Dm)),
            "w_gate": _w((lambda *s: torch.randn(*s, dtype=torch.bfloat16) * 0.8)(Dm, Df) * (Dm ** -0.5)),
            "w_up": _w((lambda *s: torch.randn(*s, dtype=torch.bfloat16) * 0.8)(Dm, Df) * (Dm ** -0.5)),
            "w_down": _w((lambda *s: torch.randn(*s, dtype=torch.bfloat16) * 0.8)(Df, Dm) * (Df ** -0.5)),
        }
    _B_in = _B_setup()

    return {
        "A_x": _A_in["x"],
        "A_wq": _A_in["wq"],
        "A_wk": _A_in["wk"],
        "A_wv": _A_in["wv"],
        "A_wo": _A_in["wo"],
        "B_x": _B_in["x"],
        "B_w_gate": _B_in["w_gate"],
        "B_w_up": _B_in["w_up"],
        "B_w_down": _B_in["w_down"],
    }

def reference(A_x, A_wq, A_wk, A_wv, A_wo, B_x, B_w_gate, B_w_up, B_w_down):
    def _A_ref(x, wq, wk, wv, wo):
        B, S, D = x.shape
        H = 32
        Dh = D // H
        q = (lambda x, *d: x.permute(*d))((x @ wq).reshape(B, S, H, Dh), 0, 2, 1, 3)
        k = x @ wk
        v = x @ wv
        scores = torch.einsum("bhqd,bkd->bhqk", q, k) * (Dh ** -0.5)
        p = _softmax(scores, axis=-1)
        o = torch.einsum("bhqk,bkd->bhqd", p, v)
        return (lambda x, *d: x.permute(*d))(o, 0, 2, 1, 3).reshape(B, S, H * Dh) @ wo

    def _B_ref(x, w_gate, w_up, w_down):
        g = torch.einsum("bsd,df->bsf", x, w_gate)
        u = torch.einsum("bsd,df->bsf", x, w_up)
        h = _gelu(g) * u
        return torch.einsum("bsf,fd->bsd", h, w_down)

    x = A_x
    x = x + _A_ref(_layernorm(x, axis=-1), A_wq, A_wk, A_wv, A_wo)
    x = x + _B_ref(_layernorm(x, axis=-1), B_w_gate, B_w_up, B_w_down)
    x = x + _A_ref(_layernorm(x, axis=-1), A_wq, A_wk, A_wv, A_wo)
    x = x + _B_ref(_layernorm(x, axis=-1), B_w_gate, B_w_up, B_w_down)
    return x
```

```python
from common import *
def gen_attn(name="attn_kernel"):
    k=K(name,256,512,163840)
    S=[16,32]; O=48; C=64; P=80; Q=88; KF=[96,102]; VF=[108,116]; k.nv=128
    k.exit_extra()
    k.srd(8,88,WS_SIZE)
    k.e(f"""v_lshrrev_b32 v5, 6, v0
    v_and_b32 v0, 63, v0
    v_readfirstlane_b32 s3, v5
    v_lshlrev_b32 v1, 4, v0
    s_and_b32 s4, s2, 7
    s_lshr_b32 s5, s2, 3
    s_lshl_b32 s4, s4, 3
    s_lshr_b32 s6, s5, 2
    s_add_u32 s4, s4, s6
    s_and_b32 s5, s5, 3
    s_lshl_b32 s5, s5, 3
    s_add_u32 s5, s5, s3
    s_lshl_b32 s20, s3, 10
    s_add_u32 s21, s20, {KVI}
    v_and_b32 v7, 31, v0
    v_lshrrev_b32 v8, 5, v0
    s_mul_i32 s6, s5, 5
    s_mul_i32 s22, s4, {2*80*256}
    v_lshrrev_b32 v9, 4, v7
    v_mul_u32_u24 v9, {80*256}, v9
    v_and_b32 v10, 15, v0
    v_lshl_add_u32 v9, v10, 4, v9""")
    def hpaddr(d,hp):
        k.e(f"""v_lshrrev_b32 v11, 1, v{hp}
        v_lshl_add_u32 v{d}, v11, 8, v9
        v_and_b32 v11, 1, v{hp}
        v_lshl_add_u32 v{d}, v11, 3, v{d}""")
    k.e("v_lshl_add_u32 v10, v8, 1, s6"); hpaddr(4,10)
    k.e("v_add_u32 v10, 1, v10"); hpaddr(5,10)
    k.e("v_add_u32 v10, 4, v8\nv_add_u32 v10, s6, v10"); hpaddr(6,10)
    k.e(f"""v_mov_b32 v12, 0x7fff0000
    v_cmp_eq_u32 vcc, 0, v8
    s_add_u32 s23, s22, {QB}
    s_mov_b32 s24, {KMAX}
    v_cndmask_b32 v6, v12, v6, vcc
    v_lshlrev_b32 v13, 3, v0
    s_waitcnt lgkmcnt(0)""")
    k.vmop(f"buffer_load_dwordx2 {vr(Q,2)}, v4, s[8:11], s23 offen",'q')
    k.vmop(f"buffer_load_dwordx2 {vr(Q+2,2)}, v5, s[8:11], s23 offen",'q')
    k.vmop(f"buffer_load_dwordx2 {vr(Q+4,2)}, v6, s[8:11], s23 offen",'q')
    k.vmop(f"buffer_load_dwordx2 v[14:15], v13, s[8:11], s24 offen",'q')
    for i in range(20):
        k.e(f"s_add_u32 m0, s20, {i*8192}\ns_add_u32 s25, s21, {i*8192}")
        k.vmop(f"buffer_load_dwordx4 v1, s[8:11], s25 offen lds", 'a' if i<4 else 'b')
    k.e("v_add_u32 v10, s6, v8"); hpaddr(4,10)
    k.e("v_add_u32 v5, 256, v4")
    k.e(f"""v_lshlrev_b32 v2, 3, v7
    v_mul_u32_u24 v3, 320, v8
    v_lshl_add_u32 v3, v7, 4, v3
    s_mov_b32 s30, 0x000fffff
    s_mov_b32 s31, 0x000fffff
    v_and_b32 v10, 27, v7
    v_cmp_eq_u32 vcc, 24, v10
    v_mov_b32 v11, 0x3f803f80
    s_nop 0
    v_cndmask_b32 v11, 0, v11, vcc""")
    for b in VF:
        for i in range(8): k.e(f"v_mov_b32 v{b+i}, v11")
    k.vmwait('q')
    k.e(f"v_max_f32 v14, v14, v15\nv_mov_b32 v10, 0")
    for i in range(6): k.e(f"v_dot2_f32_bf16 v10, v{Q+i}, v{Q+i}, v10")
    xsum32(k,14,15,"v_max_f32"); xsum16(k,14,15,"v_max_f32")
    for sh in (8,4,2,1): k.e(f"s_nop 1\nv_max_f32_dpp v14, v14, v14 row_ror:{sh} row_mask:0xf bank_mask:0xf")
    xsum32(k,10,11)
    k.e(f"""v_mul_f32 v10, v10, v14
    v_sqrt_f32 v10, v10
    s_mov_b32 s28, 0
    v_mul_f32 v10, {fl(-1.02)}, v10""")
    k.vmwait('a')
    k.e("s_barrier")
    k.label("restart")
    for i in range(16): k.e(f"v_mov_b32 v{C+i}, v10\nv_mov_b32 v{O+i}, 0")
    def rdk(t,b):
        k.e(f"ds_read_b128 {vr(KF[b],4)}, v1 offset:{t*2560}\nds_read_b64 {vr(KF[b]+4,2)}, v2 offset:{t*2560+1024}")
    def rdv(t,b):
        k.e(f"""s_mov_b64 exec, s[30:31]
        ds_read_b128 {vr(VF[b],4)}, v3 offset:{t*2560+1280}
        ds_read_b128 {vr(VF[b]+4,4)}, v3 offset:{t*2560+1920}
        s_mov_b64 exec, -1""")
    def qk1(b,s): k.e(f"v_mfma_f32_32x32x16_bf16 {vr(S[s],16)}, {vr(KF[b],4)}, {vr(Q,4)}, {vr(C,16)}")
    def qk2(b,s): k.e(f"v_mfma_f32_32x32x8_bf16 {vr(S[s],16)}, {vr(KF[b]+4,2)}, {vr(Q+4,2)}, {vr(S[s],16)}")
    rdk(0,0); rdk(1,1); rdv(0,0)
    k.e("s_waitcnt lgkmcnt(4)")
    qk1(0,0); qk2(0,0)
    k.e("s_mov_b32 s29, 0\ns_nop 7\ns_nop 3")
    k.label("loop")
    for t in range(8):
        b=t%2; n=1-b; s=S[b]
        k.e("s_waitcnt lgkmcnt(2)")
        qk1(n,n)
        for i in range(8): k.e(f"v_exp_f32 v{s+i}, v{s+i}")
        qk2(n,n)
        rdk(t+2,b)
        rdv(t+1,n)
        for i in range(4): k.e(f"v_cvt_pk_bf16_f32 v{P+i}, v{s+2*i}, v{s+2*i+1}")
        for i in range(8,12): k.e(f"v_exp_f32 v{s+i}, v{s+i}")
        k.e("s_waitcnt lgkmcnt(4)")
        k.e(f"v_mfma_f32_32x32x16_bf16 {vr(O,16)}, {vr(VF[b],4)}, {vr(P,4)}, {vr(O,16)}")
        for i in range(12,16): k.e(f"v_exp_f32 v{s+i}, v{s+i}")
        for i in range(4,8): k.e(f"v_cvt_pk_bf16_f32 v{P+i}, v{s+2*i}, v{s+2*i+1}")
        if t==7:
            k.e(f"v_add_u32 v1, {8*2560}, v1\nv_add_u32 v2, {8*2560}, v2")
        else: k.e("s_nop 1")
        k.e(f"v_mfma_f32_32x32x16_bf16 {vr(O,16)}, {vr(VF[b]+4,4)}, {vr(P+4,4)}, {vr(O,16)}")
    k.e(f"""v_add_u32 v3, {8*2560}, v3
    s_add_u32 s29, s29, 1
    s_or_b32 s26, s29, s28
    s_cmp_lg_u32 s26, 1
    s_cbranch_scc1 {k.ref('nobar')}
    s_waitcnt vmcnt(0)
    s_barrier""")
    k.label("nobar")
    k.e(f"s_cmp_lt_u32 s29, 8\ns_cbranch_scc1 {k.ref('loop')}")
    k.e(f"""s_waitcnt lgkmcnt(0)
    s_nop 7
    s_nop 3
    v_cmp_gt_f32 vcc, {fl(2.0**-40)}, v{O+12}
    s_cmp_lg_u32 s28, 0
    s_cbranch_scc1 {k.ref('fin')}
    s_cmp_eq_u64 vcc, 0
    s_cbranch_scc1 {k.ref('fin')}""")
    k.e(f"""s_mov_b32 s28, 16
    v_subrev_u32 v1, {64*2560}, v1
    v_subrev_u32 v2, {64*2560}, v2
    v_subrev_u32 v3, {64*2560}, v3
    v_mov_b32 v10, 0xff800000
    v_mov_b32 v12, v1
    v_mov_b32 v13, v2
    s_mov_b32 s29, 0""")
    k.label("fb")
    k.e(f"""ds_read_b128 {vr(KF[0],4)}, v12
    ds_read_b64 {vr(KF[0]+4,2)}, v13 offset:1024
    s_waitcnt lgkmcnt(0)
    v_mfma_f32_32x32x16_bf16 {vr(S[0],16)}, {vr(KF[0],4)}, {vr(Q,4)}, 0""")
    qk2(0,0)
    k.e("v_add_u32 v12, 2560, v12\nv_add_u32 v13, 2560, v13\ns_nop 7\ns_nop 3")
    for i in range(0,16,2): k.e(f"v_max3_f32 v10, v10, v{S[0]+i}, v{S[0]+i+1}")
    k.e(f"s_add_u32 s29, s29, 1\ns_cmp_lt_u32 s29, 64\ns_cbranch_scc1 {k.ref('fb')}")
    xsum32(k,10,11,"v_max_f32")
    k.e(f"v_sub_f32 v10, 0, v10\ns_branch {k.ref('restart')}")
    k.label("fin")
    k.e(f"v_rcp_f32 v10, v{O+12}\ns_add_u32 s23, s22, {OB}\nv_mov_b32 v11, v10")
    for j,a in enumerate((4,5,6)):
        o=O+4*j
        if j==2: k.e('s_mov_b32 exec_hi, 0')
        k.e(f"""v_pk_mul_f32 {vr(o,2)}, {vr(o,2)}, v[10:11]
        v_pk_mul_f32 {vr(o+2,2)}, {vr(o+2,2)}, v[10:11]
        v_cvt_pk_bf16_f32 v{o}, v{o}, v{o+1}
        v_cvt_pk_bf16_f32 v{o+1}, v{o+2}, v{o+3}
        buffer_store_dwordx2 {vr(o,2)}, v{a}, s[8:11], s23 offen""")
    return k
```

```python
import struct
WQKV=0x000000; WO=0x100000; WGU=0x200000; WD=0x600000
XB=0x800000; QB=0xB00000; OB=0xE00000; HB=0x1100000; KVI=0x1700000; KMAX=0x1740000
WS_SIZE=0x10000000
QBASE=[-2,2,8,13,18,24,29,34]
def f2u(x): return struct.unpack("<I",struct.pack("<f",x))[0]
def fl(x): return "0x%08x"%f2u(x)
def vr(a,n=1): return f"v{a}" if n==1 else f"v[{a}:{a+n-1}]"
def sr(a,n=1): return f"s{a}" if n==1 else f"s[{a}:{a+n-1}]"
class K:
    def __init__(s,name,grid,block,lds):
        s.name=name; s.grid=grid; s.block=block; s.lds=lds; s.L=[]; s.vm=[]; s.nv=256; s.na=0; s.lab=0
    def e(s,t):
        for ln in t.strip("\n").split("\n"):
            s.L.append("    "+ln.strip())
    def label(s,n): s.L.append(f"{s.name}_{n}:")
    def ref(s,n): return f"{s.name}_{n}"
    def vmop(s,t,tag):
        s.e(t); s.vm.append(tag); assert len(s.vm)<=63,(s.name,len(s.vm))
    def vmwait(s,tag):
        idx=[i for i,x in enumerate(s.vm) if x==tag]
        if not idx: return
        n=len(s.vm)-1-idx[-1]
        s.e(f"s_waitcnt vmcnt({n})"); s.vm=s.vm[idx[-1]+1:]
    def srd(s,d,off,size):
        s.e(f"s_load_dwordx2 s[{d}:{d+1}], s[0:1], {off}\ns_mov_b32 s{d+2}, {size}\ns_mov_b32 s{d+3}, 0x00020000")
    def exit_extra(s):
        s.e(f"s_cmp_ge_u32 s2, {s.grid}\ns_cbranch_scc1 {s.ref('end')}")
    def text(s):
        acc=((s.nv+3)//4)*4
        return f"""
.text
.globl {s.name}
.p2align 8
.type {s.name},@function
{s.name}:
"""+"\n".join(s.L)+f"""
{s.name}_end:
    s_endpgm
.section .rodata,"a"
.p2align 6
.amdhsa_kernel {s.name}
  .amdhsa_next_free_vgpr {acc+s.na}
  .amdhsa_next_free_sgpr 102
  .amdhsa_accum_offset {acc}
  .amdhsa_group_segment_fixed_size 0
  .amdhsa_kernarg_size 96
  .amdhsa_user_sgpr_count 2
  .amdhsa_user_sgpr_kernarg_segment_ptr 1
  .amdhsa_system_sgpr_workgroup_id_x 1
.end_amdhsa_kernel
"""
    def launch(s): return f"; @launch kernel={s.name} grid=({s.grid},1,1) block=({s.block},1,1) lds={s.lds}"
def xsum32(k,a,t,op="v_add_f32"):
    k.e(f"v_mov_b32 v{t}, v{a}\ns_nop 1\nv_permlane32_swap_b32 v{a}, v{t}\ns_nop 1\n{op} v{a}, v{a}, v{t}")
def xsum16(k,a,t,op="v_add_f32"):
    k.e(f"v_mov_b32 v{t}, v{a}\ns_nop 1\nv_permlane16_swap_b32 v{a}, v{t}\ns_nop 1\n{op} v{a}, v{a}, v{t}")
```

```python
from common import *
import math
def gen_gemm_s(name,kind,first=False,last=False):
    KS={'qkv':20,'wo':20,'down':48}[kind]; NT={'qkv':6,'wo':5,'down':5}[kind]
    ABASE={'qkv':WQKV,'wo':WO,'down':WD}[kind]
    BBASE={'qkv':XB,'wo':OB,'down':HB}[kind]
    PC=KS*4
    NC=KS//4; CH=NT*4096
    SL=min(NC,8)
    k=K(name,256,256,SL*CH)
    b_rm = (kind=='qkv' and first)
    VB=16; VA=VB+SL*16; VC=VA+2*NT*4; VR=VC+NT*4; k.nv=VR+NT*2+2
    k.exit_extra()
    k.srd(8,88,WS_SIZE)
    if first: k.srd(12,0,2048*640*2)
    if last: k.srd(16,72,2048*640*2)
    k.e(f"""v_lshrrev_b32 v5, 6, v0
    v_and_b32 v0, 63, v0
    v_readfirstlane_b32 s3, v5
    v_lshlrev_b32 v1, 4, v0
    s_and_b32 s4, s2, 7
    s_lshr_b32 s5, s2, 3
    s_and_b32 s6, s5, 7
    s_lshr_b32 s5, s5, 3
    s_lshl_b32 s4, s4, 2
    s_add_u32 s4, s4, s5
    s_lshl_b32 s4, s4, 2
    s_add_u32 s4, s4, s3
    s_mul_i32 s20, s6, {KS*NT*1024}
    s_mul_i32 s21, s3, {NT*1024}
    s_add_u32 s20, s20, s21
    s_add_u32 s20, s20, {ABASE}
    v_add_u32 v2, 0x10000, v1
    v_add_u32 v3, 0x20000, v1
    v_and_b32 v6, 15, v0
    v_lshrrev_b32 v7, 4, v0""")
    if b_rm:
        k.e(f"""v_mul_u32_u24 v4, 1280, v6
        v_lshl_add_u32 v4, v7, 4, v4
        s_mul_i32 s22, s4, {16*1280}""")
    else:
        k.e(f"s_mul_i32 s22, s4, {PC*256}\ns_add_u32 s22, s22, {BBASE}")
    k.e("s_waitcnt lgkmcnt(0)")
    def issue(c):
        sl=c%SL
        k.e(f"s_add_u32 m0, s21, {sl*CH}\ns_add_u32 s23, s20, {c*CH}")
        for t in range(NT):
            if t==4: k.e(f"s_add_u32 m0, s21, {sl*CH+4096}\ns_add_u32 s23, s20, {c*CH+4096}")
            k.vmop(f"buffer_load_dwordx4 v1, s[8:11], s23 offen offset:{(t%4)*1024} lds",c)
        if not b_rm: k.e(f"s_add_u32 s23, s22, {c*4096}")
        for q in range(4):
            d=VB+sl*16+q*4
            if b_rm: k.vmop(f"buffer_load_dwordx4 {vr(d,4)}, v4, s[12:15], s22 offen offset:{(c*4+q)*64}",c)
            else: k.vmop(f"buffer_load_dwordx4 {vr(d,4)}, v1, s[8:11], s23 offen offset:{q*1024}",c)
    def issue_res():
        for t in range(NT):
            if first: k.vmop(f"buffer_load_dwordx2 {vr(VR+2*t,2)}, v9, s[12:15], s25 offen offset:{t*32}",'res')
            else: k.vmop(f"buffer_load_dwordx2 {vr(VR+2*t,2)}, v8, s[8:11], s24 offen offset:{t*512}",'res')
    PRE=min(NC,7)
    for c in range(PRE): issue(c)
    k.e(f"""v_lshrrev_b32 v8, 1, v7
    v_lshlrev_b32 v8, 8, v8
    v_lshl_add_u32 v8, v6, 4, v8
    v_and_b32 v9, 1, v7
    v_lshl_add_u32 v8, v9, 3, v8
    v_mul_u32_u24 v9, 1280, v6
    v_lshl_add_u32 v9, v7, 3, v9""")
    if kind!='qkv':
        k.e(f"""s_mul_i32 s24, s4, {80*256}
        s_mul_i32 s26, s6, {5*512}
        s_add_u32 s24, s24, s26
        s_add_u32 s24, s24, {XB}
        s_mul_i32 s25, s4, {16*1280}
        s_mul_i32 s26, s6, 160
        s_add_u32 s25, s25, s26""")
        if NC<=PRE: issue_res()
    else:
        for i in range(10,14): k.e(f"v_mov_b32 v{i}, 0")
        k.e("s_mov_b32 s27, 0x3f803f80")
    def rd(ks,buf):
        c=ks//4; off=(c%SL)*CH+(ks%4)*NT*1024
        for t in range(NT):
            o=off+t*1024
            k.e(f"ds_read_b128 {vr(VA+buf*NT*4+t*4,4)}, v{1+o//65536} offset:{o%65536}")
    for c in range(NC):
        k.vmwait(c)
        k.e("s_barrier")
        rd(c*4,0)
        if c+PRE<NC:
            issue(c+PRE)
            if c+PRE==NC-1 : pass
        elif c+PRE==NC and kind!='qkv' and NC>PRE: issue_res()
        for q in range(4):
            ks=c*4+q; b=VB+(c%SL)*16+q*4
            if q<3: rd(ks+1,(q+1)%2)
            if kind=='qkv':
                for j in range(4):
                    k.e(f"v_dot2_f32_bf16 v{10+j%2}, v{b+j}, s27, v{10+j%2}\nv_dot2_f32_bf16 v{12+j%2}, v{b+j}, v{b+j}, v{12+j%2}")
            k.e(f"s_waitcnt lgkmcnt({NT if q<3 else 0})")
            for t in range(NT):
                cc = "0" if ks==0 else vr(VC+t*4,4)
                k.e(f"v_mfma_f32_16x16x32_bf16 {vr(VC+t*4,4)}, {vr(VA+(q%2)*NT*4+t*4,4)}, {vr(b,4)}, {cc}")
    T0=VA
    if kind!='qkv':
        k.vmwait('res')
        k.e("s_nop 4")
        for t in range(NT):
            r=VR+2*t; a=VC+4*t; x=T0+4*t
            k.e(f"""v_lshlrev_b32 v{x}, 16, v{r}
            v_and_b32 v{x+1}, 0xffff0000, v{r}
            v_lshlrev_b32 v{x+2}, 16, v{r+1}
            v_and_b32 v{x+3}, 0xffff0000, v{r+1}
            v_pk_add_f32 {vr(x,2)}, {vr(x,2)}, {vr(a,2)}
            v_pk_add_f32 {vr(x+2,2)}, {vr(x+2,2)}, {vr(a+2,2)}
            v_cvt_pk_bf16_f32 v{x}, v{x}, v{x+1}
            v_cvt_pk_bf16_f32 v{x+1}, v{x+2}, v{x+3}""")
            if last: k.e(f"buffer_store_dwordx2 {vr(x,2)}, v9, s[16:19], s25 offen offset:{t*32}")
            else: k.e(f"buffer_store_dwordx2 {vr(x,2)}, v8, s[8:11], s24 offen offset:{t*512}")
        return k
    k.e("s_nop 2\nv_add_f32 v10, v10, v11\nv_add_f32 v12, v12, v13")
    xsum32(k,10,11); xsum32(k,12,13); xsum16(k,10,11); xsum16(k,12,13)
    tab=sum(((q+2)&0xff)<<(8*i) for i,q in enumerate(QBASE))
    QS=math.log2(math.e)/math.sqrt(20)
    k.e(f"""v_mul_f32 v10, {fl(1/640)}, v10
    v_mul_f32 v12, {fl(1/640)}, v12
    v_fma_f32 v12, -v10, v10, v12
    v_add_f32 v12, {fl(1e-5)}, v12
    v_rsq_f32 v12, v12
    s_mov_b32 s28, {tab&0xffffffff}
    s_mov_b32 s29, {tab>>32}
    s_lshl_b32 s26, s6, 3
    s_lshr_b64 s[28:29], s[28:29], s26
    s_and_b32 s28, s28, 0xff
    s_lshl_b32 s28, s28, 9
    s_mul_i32 s24, s4, {80*256}
    s_add_u32 s24, s24, s28
    s_add_u32 s24, s24, {QB-1024}
    v_mul_f32 v10, {fl(QS)}, v12
    v_mov_b32 v13, v12
    v_mov_b32 v11, v10""")
    def qtile(t):
        a=VC+4*t; x=T0+4*t
        k.e(f"""v_pk_mul_f32 {vr(x,2)}, {vr(a,2)}, v[10:11]
        v_pk_mul_f32 {vr(x+2,2)}, {vr(a+2,2)}, v[10:11]
        v_cvt_pk_bf16_f32 v{x}, v{x}, v{x+1}
        v_cvt_pk_bf16_f32 v{x+1}, v{x+2}, v{x+3}
        buffer_store_dwordx2 {vr(x,2)}, v8, s[8:11], s24 offen offset:{t*512}""")
    for t in range(2,6): qtile(t)
    k.e(f"s_cmp_lt_u32 s6, 2\ns_cbranch_scc1 {k.ref('kv')}")
    qtile(0); qtile(1)
    k.e("s_endpgm")
    k.label("kv")
    a=VC
    for i in range(0,8,2): k.e(f"v_pk_mul_f32 {vr(a+i,2)}, {vr(a+i,2)}, v[12:13]")
    k.e(f"""s_lshr_b32 s24, s4, 1
    s_mul_i32 s24, s24, 2560
    s_add_u32 s24, s24, {KVI}
    s_and_b32 s25, s4, 1
    v_cvt_pk_bf16_f32 v{T0}, v{a}, v{a+1}
    v_cvt_pk_bf16_f32 v{T0+1}, v{a+2}, v{a+3}
    v_cvt_pk_bf16_f32 v{T0+2}, v{a+4}, v{a+5}
    v_cvt_pk_bf16_f32 v{T0+3}, v{a+6}, v{a+7}
    s_cmp_eq_u32 s6, 1
    s_cbranch_scc1 {k.ref('v')}""")
    k.e(f"""s_lshl_b32 s25, s25, 4
    v_add_u32 v6, s25, v6
    v_lshrrev_b32 v8, 1, v7
    v_lshlrev_b32 v8, 9, v8
    v_lshl_add_u32 v8, v6, 4, v8
    v_and_b32 v9, 1, v7
    v_lshl_add_u32 v8, v9, 3, v8
    v_lshlrev_b32 v9, 3, v6
    buffer_store_dwordx2 {vr(T0,2)}, v8, s[8:11], s24 offen
    v_mul_f32 v10, v{a}, v{a}""")
    for i in range(1,8): k.e(f"v_fmac_f32 v10, v{a+i}, v{a+i}")
    xsum32(k,10,11); xsum16(k,10,11)
    for sh in (8,4,2,1): k.e(f"s_nop 1\nv_max_f32_dpp v10, v10, v10 row_ror:{sh} row_mask:0xf bank_mask:0xf")
    k.e(f"""s_mov_b64 exec, 0xffff
    buffer_store_dwordx2 {vr(T0+2,2)}, v9, s[8:11], s24 offen offset:1024
    s_mov_b64 exec, 1
    s_lshl_b32 s25, s4, 2
    s_add_u32 s25, s25, {KMAX}
    buffer_store_dword v10, off, s[8:11], s25
    s_endpgm""")
    k.label("v")
    k.e(f"""s_mul_i32 s25, s25, 640
    s_add_u32 s24, s24, s25
    v_lshrrev_b32 v8, 2, v6
    v_and_b32 v9, 1, v8
    v_mul_u32_u24 v9, 320, v9
    v_lshrrev_b32 v8, 1, v8
    v_lshl_add_u32 v9, v8, 3, v9
    v_and_b32 v8, 3, v6
    v_lshl_add_u32 v9, v8, 1, v9
    v_lshl_add_u32 v9, v7, 6, v9""")
    for tt in range(2):
        if tt==1: k.e("s_mov_b64 exec, 0xffff")
        for ii in range(4):
            op="buffer_store_short_d16_hi" if ii%2 else "buffer_store_short"
            k.e(f"{op} v{T0+tt*2+ii//2}, v9, s[8:11], s24 offen offset:{1280+tt*256+ii*16}")
    return k
```

```python
from common import *
def pack_path(k,nfr,ldw,kstep,joffs,center,red,dstep,wide):
    R=16
    for i in range(nfr*8): k.e(f"v_mov_b32 v{R+i}, 0")
    k.e("s_waitcnt lgkmcnt(0)")
    for f in range(nfr):
        for j in range(8):
            off=f*kstep*ldw+joffs[j]*ldw
            k.e(f"s_add_u32 s22, s20, {off}\nbuffer_load_short_d16_hi v{R+f*8+j}, v1, s[8:11], s22 offen")
    k.e("s_waitcnt vmcnt(0)")
    if center:
        k.e(f"v_add_f32 v5, v{R}, v{R+1}\nv_add_f32 v6, v{R+2}, v{R+3}")
        for i in range(4,nfr*8,2):
            k.e(f"v_add_f32 v5, v5, v{R+i}\nv_add_f32 v6, v6, v{R+i+1}")
        k.e("v_add_f32 v5, v5, v6")
        xsum32(k,5,6)
        if not wide: xsum16(k,5,6)
        k.e("ds_write_b32 v3, v5\ns_waitcnt lgkmcnt(0)\ns_barrier")
        for i in range(red): k.e(f"ds_read_b32 v{6+i}, v4 offset:{i*256}")
        k.e("s_waitcnt lgkmcnt(0)")
        for i in range(1,red): k.e(f"v_add_f32 v6, v6, v{6+i}")
        k.e(f"v_mul_f32 v6, {fl(1/640)}, v6")
        for i in range(nfr*8): k.e(f"v_sub_f32 v{R+i}, v{R+i}, v6")
    for f in range(nfr):
        for j in range(4):
            k.e(f"v_cvt_pk_bf16_f32 v{R+f*8+j}, v{R+f*8+2*j}, v{R+f*8+2*j+1}")
        k.e(f"s_add_u32 s22, s21, {f*dstep}\nbuffer_store_dwordx4 v[{R+f*8}:{R+f*8+3}], v2, s[12:15], s22 offen")
    k.e("s_endpgm")
def gen_k0():
    k=K("prep_kernel",180,512,2048); k.nv=72
    k.exit_extra()
    k.srd(12,88,WS_SIZE)
    k.e("""v_lshrrev_b32 v5, 6, v0
    v_and_b32 v0, 63, v0
    v_readfirstlane_b32 s3, v5
    v_lshlrev_b32 v2, 4, v0
    v_and_b32 v6, 15, v0
    v_lshrrev_b32 v7, 4, v0
    s_lshl_b32 s4, s3, 8
    v_lshlrev_b32 v3, 2, v0
    v_mov_b32 v4, v3
    v_add_u32 v3, s4, v3
    s_mov_b32 s11, 0x00020000
    s_lshr_b32 s5, s3, 2
    s_and_b32 s6, s3, 3""")
    k.e(f"s_cmp_ge_u32 s2, 24\ns_cbranch_scc1 {k.ref('wo')}")
    tab=sum(((q+2)&0xff)<<(8*i) for i,q in enumerate(QBASE))
    k.e(f"""s_lshl_b32 s7, s2, 1
    s_add_u32 s7, s7, s5
    s_mul_i32 s16, s7, 43
    s_lshr_b32 s16, s16, 8
    s_mul_i32 s17, s16, 6
    s_sub_u32 s17, s7, s17
    s_lshl_b32 s4, s5, 10
    v_add_u32 v4, s4, v4
    s_mul_i32 s21, s16, 20
    s_mul_i32 s4, s6, 5
    s_add_u32 s21, s21, s4
    s_mul_i32 s21, s21, 6
    s_add_u32 s21, s21, s17
    s_lshl_b32 s21, s21, 10
    s_add_u32 s21, s21, {WQKV}
    s_cmp_lt_u32 s16, 2
    s_cselect_b32 s18, 1, 0
    s_cmp_lt_u32 s17, 2
    s_cselect_b32 s19, 1, 0
    s_and_b32 s18, s18, s19
    s_cmp_eq_u32 s18, 1
    s_cbranch_scc1 {k.ref('kv')}
    s_load_dwordx2 s[8:9], s[0:1], 8
    s_mov_b32 s10, {640*640*2}
    s_mov_b32 s24, {tab&0xffffffff}
    s_mov_b32 s25, {tab>>32}
    s_lshl_b32 s4, s16, 3
    s_lshr_b64 s[24:25], s[24:25], s4
    s_and_b32 s24, s24, 0xff
    s_add_u32 s24, s24, s17
    s_sub_u32 s24, s24, 2
    s_lshl_b32 s24, s24, 5
    s_mul_i32 s20, s6, {5*32*1280}
    s_add_u32 s20, s20, s24
    v_mul_u32_u24 v1, {8*1280}, v7
    v_lshl_add_u32 v1, v6, 1, v1""")
    pack_path(k,5,1280,32,range(8),True,4,6*1024,False)
    k.label("kv")
    k.e(f"""s_cmp_eq_u32 s16, 0
    s_cbranch_scc1 {k.ref('kvk')}
    s_load_dwordx2 s[8:9], s[0:1], 24
    s_branch {k.ref('kv2')}""")
    k.label("kvk")
    k.e("s_load_dwordx2 s[8:9], s[0:1], 16")
    k.label("kv2")
    k.e(f"""s_mov_b32 s10, {640*20*2}
    s_mul_i32 s20, s6, {5*32*40}
    s_lshl_b32 s4, s17, 4
    v_add_u32 v6, s4, v6
    v_mul_u32_u24 v1, {8*40}, v7
    v_lshl_add_u32 v1, v6, 1, v1
    v_mov_b32 v8, 0x7fff0000
    v_cmp_gt_u32 vcc, 20, v6
    s_nop 1
    v_cndmask_b32 v1, v8, v1, vcc""")
    pack_path(k,5,40,32,range(8),True,4,6*1024,False)
    k.label("wo")
    k.e(f"s_cmp_ge_u32 s2, 44\ns_cbranch_scc1 {k.ref('gu')}")
    k.e(f"""s_load_dwordx2 s[8:9], s[0:1], 32
    s_mov_b32 s10, {640*640*2}
    s_sub_u32 s7, s2, 24
    s_lshl_b32 s7, s7, 1
    s_add_u32 s7, s7, s5
    s_mul_i32 s16, s7, 52
    s_lshr_b32 s16, s16, 8
    s_mul_i32 s17, s16, 5
    s_sub_u32 s17, s7, s17
    s_mul_i32 s21, s16, 20
    s_mul_i32 s4, s6, 5
    s_add_u32 s21, s21, s4
    s_mul_i32 s21, s21, 5
    s_add_u32 s21, s21, s17
    s_lshl_b32 s21, s21, 10
    s_add_u32 s21, s21, {WO}
    s_lshl_b32 s24, s7, 5
    s_mul_i32 s20, s6, {5*32*1280}
    s_add_u32 s20, s20, s24
    v_mul_u32_u24 v1, {8*1280}, v7
    v_lshl_add_u32 v1, v6, 1, v1""")
    pack_path(k,5,1280,32,range(8),False,4,5*1024,False)
    k.label("gu")
    k.e(f"s_cmp_ge_u32 s2, 140\ns_cbranch_scc1 {k.ref('wd')}")
    k.e(f"""s_sub_u32 s7, s2, 44
    s_mul_i32 s16, s7, 43
    s_lshr_b32 s16, s16, 8
    s_mul_i32 s17, s16, 6
    s_sub_u32 s17, s7, s17
    s_bitcmp1_b32 s17, 0
    s_cbranch_scc1 {k.ref('gu_u')}
    s_load_dwordx2 s[8:9], s[0:1], 48
    s_branch {k.ref('gu2')}""")
    k.label("gu_u")
    k.e("s_load_dwordx2 s[8:9], s[0:1], 56")
    k.label("gu2")
    k.e(f"""s_mov_b32 s10, {640*1536*2}
    s_mul_i32 s21, s16, 40
    s_mul_i32 s4, s3, 5
    s_add_u32 s21, s21, s4
    s_mul_i32 s21, s21, 6
    s_add_u32 s21, s21, s17
    s_lshl_b32 s21, s21, 10
    s_add_u32 s21, s21, {WGU}
    s_mul_i32 s24, s16, 192
    s_lshr_b32 s4, s17, 1
    s_lshl_b32 s4, s4, 6
    s_add_u32 s24, s24, s4
    s_mul_i32 s20, s3, {5*16*3072}
    s_add_u32 s20, s20, s24
    v_and_b32 v6, 31, v0
    v_lshrrev_b32 v7, 5, v0
    v_mul_u32_u24 v1, {8*3072}, v7
    v_lshl_add_u32 v1, v6, 1, v1""")
    pack_path(k,5,3072,16,range(8),True,8,6*1024,True)
    k.label("wd")
    k.e(f"""s_load_dwordx2 s[8:9], s[0:1], 64
    s_mov_b32 s10, {640*1536*2}
    s_sub_u32 s7, s2, 140
    s_mul_i32 s16, s7, 52
    s_lshr_b32 s16, s16, 8
    s_mul_i32 s17, s16, 5
    s_sub_u32 s17, s7, s17
    s_mul_i32 s21, s16, 48
    s_mul_i32 s4, s3, 6
    s_add_u32 s21, s21, s4
    s_mul_i32 s21, s21, 5
    s_add_u32 s21, s21, s17
    s_lshl_b32 s21, s21, 10
    s_add_u32 s21, s21, {WD}
    s_lshl_b32 s24, s7, 5
    s_mul_i32 s20, s3, {6*32*1280}
    s_add_u32 s20, s20, s24
    v_lshrrev_b32 v8, 1, v7
    v_and_b32 v7, 1, v7
    v_lshlrev_b32 v8, 4, v8
    v_lshl_add_u32 v7, v7, 2, v8
    v_mul_u32_u24 v1, 1280, v7
    v_lshl_add_u32 v1, v6, 1, v1""")
    pack_path(k,6,1280,32,[0,1,2,3,8,9,10,11],False,8,5*1024,False)
    return k
```

```python
from common import *
import math
def gen_k4(name="gu_kernel"):
    NC=10; CH=24576; SL=6
    k=K(name,256,256,SL*CH)
    VB=16; VC=VB+96; VA=VC+96; k.nv=VA+48
    k.exit_extra()
    k.srd(8,88,WS_SIZE)
    k.e(f"""v_lshrrev_b32 v5, 6, v0
    v_and_b32 v0, 63, v0
    v_readfirstlane_b32 s3, v5
    v_lshlrev_b32 v1, 4, v0
    s_and_b32 s4, s2, 7
    s_lshr_b32 s5, s2, 3
    s_and_b32 s6, s5, 7
    s_lshr_b32 s5, s5, 3
    s_and_b32 s7, s4, 1
    s_lshl_b32 s7, s7, 3
    s_add_u32 s6, s6, s7
    s_lshr_b32 s4, s4, 1
    s_lshl_b32 s4, s4, 2
    s_add_u32 s4, s4, s5
    s_lshl_b32 s4, s4, 2
    s_add_u32 s4, s4, s3
    s_mul_i32 s20, s6, {40*6*1024}
    s_mul_i32 s21, s3, {6*1024}
    s_add_u32 s20, s20, s21
    s_add_u32 s20, s20, {WGU}
    v_add_u32 v2, 0x10000, v1
    v_add_u32 v3, 0x20000, v1
    v_and_b32 v6, 15, v0
    v_bfe_u32 v7, v0, 4, 1
    v_lshrrev_b32 v8, 5, v0
    v_lshlrev_b32 v6, 4, v6
    v_lshl_add_u32 v6, v8, 8, v6
    v_mul_u32_u24 v4, {80*256}, v7
    v_add_u32 v4, v4, v6
    v_mul_u32_u24 v5, {192*256}, v7
    v_add_u32 v5, v5, v6
    s_mul_i32 s22, s4, {2*80*256}
    s_add_u32 s22, s22, {XB}
    s_waitcnt lgkmcnt(0)""")
    def issue(c):
        sl=c%SL
        k.e(f"s_add_u32 m0, s21, {sl*CH}\ns_add_u32 s23, s20, {c*CH}")
        for t in range(6):
            if t==4: k.e(f"s_add_u32 m0, s21, {sl*CH+4096}\ns_add_u32 s23, s20, {c*CH+4096}")
            k.vmop(f"buffer_load_dwordx4 v1, s[8:11], s23 offen offset:{(t%4)*1024} lds",c)
        k.e(f"s_add_u32 s23, s22, {c*2048}")
        for q in range(4):
            k.vmop(f"buffer_load_dwordx4 {vr(VB+sl*16+q*4,4)}, v4, s[8:11], s23 offen offset:{q*512}",c)
    for c in range(SL): issue(c)
    for i in range(10,14): k.e(f"v_mov_b32 v{i}, 0")
    k.e("s_mov_b32 s27, 0x3f803f80")
    def rd1(ks,buf,t):
        c=ks//4; o=(c%SL)*CH+(ks%4)*6144+t*1024
        k.e(f"ds_read_b128 {vr(VA+buf*24+t*4,4)}, v{1+o//65536} offset:{o%65536}")
    for c in range(NC):
        k.vmwait(c)
        k.e("s_barrier")
        for t in range(6): rd1(c*4,0,t)
        if c>=1 and c+SL-1<NC: issue(c+SL-1)
        for q in range(4):
            ks=c*4+q; b=VB+(c%SL)*16+q*4
            for t in range(6):
                if q<3:
                    k.e("s_waitcnt lgkmcnt(5)")
                else:
                    k.e(f"s_waitcnt lgkmcnt({5-t})")
                cc="0" if ks==0 else vr(VC+t*16,16)
                k.e(f"v_mfma_f32_32x32x16_bf16 {vr(VC+t*16,16)}, {vr(VA+(q%2)*24+t*4,4)}, {vr(b,4)}, {cc}")
                if q<3: rd1(ks+1,(q+1)%2,t)
                if t<4:
                    j=t
                    k.e(f"v_dot2_f32_bf16 v{10+j%2}, v{b+j}, s27, v{10+j%2}\nv_dot2_f32_bf16 v{12+j%2}, v{b+j}, v{b+j}, v{12+j%2}")
    c1=2*math.sqrt(2/math.pi)*math.log2(math.e); c2=0.044715
    k.e("s_nop 2\nv_add_f32 v10, v10, v11\nv_add_f32 v12, v12, v13")
    xsum32(k,10,11); xsum32(k,12,13)
    k.e(f"""v_mul_f32 v10, {fl(1/640)}, v10
    v_mul_f32 v12, {fl(1/640)}, v12
    v_fma_f32 v12, -v10, v10, v12
    v_add_f32 v12, {fl(1e-5)}, v12
    v_rsq_f32 v14, v12
    v_mov_b32 v13, v12
    s_mul_i32 s24, s4, {2*192*256}
    s_mul_i32 s25, s6, {12*256}
    s_add_u32 s24, s24, s25
    s_add_u32 s24, s24, {HB}
    v_mul_f32 v10, {fl(-c1)}, v14
    v_mul_f32 v14, v14, v14
    v_mov_b32 v11, v10
    v_mul_f32 v14, v14, v10
    v_mul_f32 v14, {fl(c2)}, v14
    v_mov_b32 v15, v14""")
    T=VA
    for sub in range(3):
        g=VC+sub*32; u=g+16
        for half in range(2):
            x=T+((sub*2+half)%2)*24
            for i in range(0,8,2):
                w=g+half*8+i
                k.e(f"v_pk_mul_f32 {vr(x+i,2)}, {vr(w,2)}, {vr(w,2)}")
            for i in range(0,8,2): k.e(f"v_pk_fma_f32 {vr(x+i,2)}, {vr(x+i,2)}, v[14:15], v[10:11]")
            for i in range(0,8,2): k.e(f"v_pk_mul_f32 {vr(x+i,2)}, {vr(x+i,2)}, {vr(g+half*8+i,2)}")
            for i in range(8): k.e(f"v_exp_f32 v{x+i}, v{x+i}")
            for i in range(0,8,2): k.e(f"v_pk_mul_f32 {vr(x+8+i,2)}, {vr(g+half*8+i,2)}, {vr(u+half*8+i,2)}")
            for i in range(0,8,2): k.e(f"v_pk_fma_f32 {vr(x+i,2)}, {vr(x+i,2)}, v[12:13], v[12:13]")
            for i in range(8): k.e(f"v_rcp_f32 v{x+i}, v{x+i}")
            k.e("s_nop 0")
            for i in range(0,8,2): k.e(f"v_pk_mul_f32 {vr(x+i,2)}, {vr(x+i,2)}, {vr(x+8+i,2)}")
            for i in range(4): k.e(f"v_cvt_pk_bf16_f32 v{x+16+i}, v{x+2*i}, v{x+2*i+1}")
            k.e(f"buffer_store_dwordx4 {vr(x+16,4)}, v5, s[8:11], s24 offen offset:{(sub*4+half*2)*256}")
    return k
```

```python
import sys
sys.path.insert(0,"gen")
from common import *
from k0 import gen_k0
from gemm_s import gen_gemm_s
from attn import gen_attn
from k4 import gen_k4
NAME="interleave_layers__grouped_kv_mqa__glu_gated_geglu__prompt"
def build(out):
    k0=gen_k0(); q1=gen_gemm_s("qkv1_kernel",'qkv',first=True); q2=gen_gemm_s("qkv2_kernel",'qkv')
    at=gen_attn(); w1=gen_gemm_s("wo1_kernel",'wo',first=True); w2=gen_gemm_s("wo2_kernel",'wo')
    gu=gen_k4(); d1=gen_gemm_s("down1_kernel",'down'); d2=gen_gemm_s("down2_kernel",'down',last=True)
    seq=[k0,q1,at,w1,gu,d1,q2,at,w2,gu,d2]
    head=[l for l in open(f"cdna_kernels/{NAME}.s.ref").read().split("\n") if l.startswith(";") and "launch" not in l and "grid=" not in l]
    s="\n".join(head)+"\n"+"\n".join(k.launch() for k in seq)+'\n.amdgcn_target "amdgcn-amd-amdhsa--gfx950"\n'
    seen=[]
    for k in seq:
        if k not in seen: seen.append(k); s+=k.text()
    open(out,"w").write(s)
if __name__=="__main__":
    build(sys.argv[1] if len(sys.argv)>1 else f"cdna_kernels/{NAME}.s")
```
